```python
import torch

def _softmax(x, axis=-1):
    return torch.softmax(x, dim=axis)
def _gelu(x):
    return torch.nn.functional.gelu(x, approximate="tanh")
def _silu(x):
    return torch.nn.functional.silu(x)
def _sigmoid(x):
    return torch.sigmoid(x)
def _layernorm(x, axis=-1, eps=1e-5):
    m = x.mean(dim=axis, keepdim=True)
    v = x.var(dim=axis, keepdim=True, unbiased=False)
    return (x - m) / torch.sqrt(v + eps)
def _scatter_add(tgt, idx, src, axis=0):
    return tgt.clone().index_add_(axis, idx, src)
def _segment_sum(src, seg, n):
    out = torch.zeros((n,) + src.shape[1:], dtype=src.dtype)
    return out.index_add_(0, seg, src)
def _pad(x, pw):
    flat = tuple(v for pair in reversed(pw) for v in pair)
    return torch.nn.functional.pad(x, flat)

kernel_name = 'parallel_sum__ssm_conv_s5__glu_gated_bilinear__prompt'

def setup_inputs():

    _w = (lambda a: (lambda t: t.to(torch.bfloat16) if t.is_floating_point() else t)(torch.as_tensor(a)))
    def _A_setup():
        B, S, D = 1, 2048, 512
        P = D
        Lambda_re = -0.5 * (lambda _x: torch.exp(torch.as_tensor(_x)))((lambda *s: torch.randn(*s, dtype=torch.bfloat16) * 0.2)(P))
        Lambda_im = (lambda *s: torch.randn(*s, dtype=torch.bfloat16) * 0.8)(P) * 1.0
        B_re = (lambda *s: torch.randn(*s, dtype=torch.bfloat16) * 0.2)(P, D) * (D ** -0.5)
        B_im = (lambda *s: torch.randn(*s, dtype=torch.bfloat16) * 0.2)(P, D) * (D ** -0.5)
        C_re = (lambda *s: torch.randn(*s, dtype=torch.bfloat16) * 0.2)(D, P) * (P ** -0.5)
        C_im = (lambda *s: torch.randn(*s, dtype=torch.bfloat16) * 0.2)(D, P) * (P ** -0.5)
        log_dt = (lambda *s: torch.randn(*s, dtype=torch.bfloat16) * 0.2)(P) * 0.3 - 2.0
        Dskip = (lambda *s: torch.randn(*s, dtype=torch.bfloat16) * 0.05)(D)
        return {
            "x": _w((lambda *s: torch.randn(*s, dtype=torch.bfloat16) * 0.05)(B, S, D)),
            "Lambda_re": _w(Lambda_re),
            "Lambda_im": _w(Lambda_im),
            "B_re": _w(B_re),
            "B_im": _w(B_im),
            "C_re": _w(C_re),
            "C_im": _w(C_im),
            "log_dt": _w(log_dt),
            "Dskip": _w(Dskip),
        }
    _A_in = _A_setup()

    def _B_setup():
        B, S, D, F = 1, 2048, 512, 1792
        return {
            "x": _w((lambda *s: torch.randn(*s, dtype=torch.bfloat16) * 0.05)(B, S, D)),
            "w_gate": _w((lambda *s: torch.randn(*s, dtype=torch.bfloat16) * 0.4)(D, F) * (D ** -0.5)),
            "w_up": _w((lambda *s: torch.randn(*s, dtype=torch.bfloat16) * 0.4)(D, F) * (D ** -0.5)),
            "w_down": _w((lambda *s: torch.randn(*s, dtype=torch.bfloat16) * 0.4)(F, D) * (F ** -0.5)),
        }
    _B_in = _B_setup()

    return {
        "A_x": _A_in["x"],
        "A_Lambda_re": _A_in["Lambda_re"],
        "A_Lambda_im": _A_in["Lambda_im"],
        "A_B_re": _A_in["B_re"],
        "A_B_im": _A_in["B_im"],
        "A_C_re": _A_in["C_re"],
        "A_C_im": _A_in["C_im"],
        "A_log_dt": _A_in["log_dt"],
        "A_Dskip": _A_in["Dskip"],
        "B_x": _B_in["x"],
        "B_w_gate": _B_in["w_gate"],
        "B_w_up": _B_in["w_up"],
        "B_w_down": _B_in["w_down"],
    }

def reference(A_x, A_Lambda_re, A_Lambda_im, A_B_re, A_B_im, A_C_re, A_C_im, A_log_dt, A_Dskip, B_x, B_w_gate, B_w_up, B_w_down):
    def _A_ref(x, Lambda_re, Lambda_im, B_re, B_im, C_re, C_im, log_dt, Dskip):
        Bsz, L, H = x.shape
        Lam = Lambda_re + 1j * Lambda_im
        Bmat = B_re + 1j * B_im
        Cmat = C_re + 1j * C_im
        dt = torch.exp(log_dt)
        Lam_bar = torch.exp(dt * Lam)
        B_bar = ((Lam_bar - 1.0) / Lam)[:, None] * Bmat
        Bu = torch.einsum("bld,pd->blp", x + 0j, B_bar)
        h = torch.zeros_like(Bu[:, 0, :])
        hs = []
        for t in range(L):
            h = Lam_bar[None, :] * h + Bu[:, t, :]
            hs.append(h)
        hseq = torch.stack(hs, 1)
        y = 2.0 * torch.einsum("blp,dp->bld", hseq, Cmat).real + x * Dskip[None, None, :]
        return y

    def _B_ref(x, w_gate, w_up, w_down):
        g = torch.einsum("bsd,df->bsf", x, w_gate)
        u = torch.einsum("bsd,df->bsf", x, w_up)
        h = g * u
        return torch.einsum("bsf,fd->bsd", h, w_down)

    x = A_x
    xn = _layernorm(x, axis=-1)
    return x + _A_ref(xn, A_Lambda_re, A_Lambda_im, A_B_re, A_B_im, A_C_re, A_C_im, A_log_dt, A_Dskip) + _B_ref(xn, B_w_gate, B_w_up, B_w_down)
```

```python
import re

def expand(op):
    op = op.strip()
    neg = op.startswith('-')
    if neg: op = op[1:]
    m = re.match(r'^abs\((.*)\)$', op)
    if m: op = m.group(1)
    m = re.match(r'^([vas])\[(\d+):(\d+)\]$', op)
    if m:
        return [f"{m.group(1)}{i}" for i in range(int(m.group(2)), int(m.group(3)) + 1)]
    if re.match(r'^[vas]\d+$', op): return [op]
    if op == 'vcc': return ['vcc_lo', 'vcc_hi']
    if op == 'exec': return ['exec_lo', 'exec_hi']
    if op in ('m0', 'vcc_lo', 'vcc_hi', 'exec_lo', 'exec_hi', 'scc'): return [op]
    return []

def R(f, lo, n=1):
    return f"{f}{lo}" if n == 1 else f"{f}[{lo}:{lo+n-1}]"
def v(lo, n=1): return R('v', lo, n)
def a(lo, n=1): return R('a', lo, n)
def s(lo, n=1): return R('s', lo, n)

TRANS = ('v_exp_f32', 'v_log_f32', 'v_rcp_f32', 'v_rsq_f32', 'v_sqrt_f32', 'v_sin_f32', 'v_cos_f32')

class I:
    __slots__ = ('mn', 'ops', 'mods', 'rd', 'wr', 'kind', 'tok', 'waits', 'cond', 'raw', 'comment', 'data')
    def __init__(self, mn, ops=(), mods='', raw=None, comment=''):
        self.mn = mn; self.ops = list(ops); self.mods = mods; self.raw = raw
        self.rd = set(); self.wr = set(); self.kind = 'other'; self.tok = None; self.waits = []
        self.cond = False; self.comment = comment; self.data = set()
        if raw is None: self.classify()
    def classify(self):
        mn = self.mn; ops = self.ops
        E = lambda xs: set(r for o in xs for r in expand(o))
        if mn.startswith('v_mfma'):
            self.kind = 'mfma'; self.wr = E(ops[:1]); self.rd = E(ops[1:])
        elif mn.startswith('v_cmp'):
            self.kind = 'valu'; self.wr = E(ops[:1]); self.rd = E(ops[1:])
        elif mn.startswith('v_permlane') and 'swap' in mn:
            self.kind = 'valu'; self.wr = E(ops); self.rd = E(ops)
        elif mn in ('v_add_co_u32', 'v_addc_co_u32'):
            self.kind = 'valu'; self.wr = E(ops[:2]); self.rd = E(ops[2:])
        elif mn.startswith('v_'):
            self.kind = 'trans' if mn in TRANS else 'valu'
            self.wr = E(ops[:1]); self.rd = E(ops[1:])
            if mn.startswith(('v_fmac', 'v_dot2c')) or 'dpp' in mn: self.rd |= self.wr
        elif mn.startswith('ds_read') or mn.startswith('ds_bpermute') or mn.startswith('ds_swizzle'):
            self.kind = 'dsr'; self.wr = E(ops[:1]); self.rd = E(ops[1:])
        elif mn.startswith('ds_write') or mn.startswith('ds_add'):
            self.kind = 'dsw'; self.rd = E(ops)
        elif mn.startswith(('buffer_load', 'global_load')):
            if 'lds' in self.mods.split() or '_lds_' in mn:
                self.kind = 'dma'; self.rd = E(ops) | {'m0'}
            else:
                self.kind = 'vld'; self.wr = E(ops[:1]); self.rd = E(ops[1:])
        elif mn.startswith(('buffer_store', 'global_store', 'buffer_atomic', 'global_atomic')):
            self.kind = 'vst'; self.rd = E(ops)
            if mn.startswith('buffer'): self.data = E(ops[:1])
            else: self.data = E(ops[1:2])
        elif mn.startswith(('s_load', 's_memtime', 's_memrealtime')):
            self.kind = 'smem'; self.wr = E(ops[:1]); self.rd = E(ops[1:])
        elif mn.startswith('s_cmp') or mn.startswith('s_bitcmp'):
            self.kind = 'salu'; self.rd = E(ops); self.wr = {'scc'}
        elif mn in ('s_barrier', 's_nop', 's_waitcnt', 's_endpgm', 's_sleep', 's_setprio') or mn.startswith(('s_cbranch', 's_branch')):
            self.kind = 'sopp'
        elif mn.startswith('s_'):
            self.kind = 'salu'; self.wr = E(ops[:1]); self.rd = E(ops[1:])
            if 'saveexec' in mn: self.wr |= {'exec_lo', 'exec_hi'}
        else:
            raise ValueError("unknown mnemonic " + mn)
    def text(self):
        if self.raw is not None: return self.raw
        t = self.mn
        if self.ops: t += ' ' + ', '.join(str(o) for o in self.ops)
        if self.mods: t += ' ' + self.mods
        if self.comment: t += '   ; ' + self.comment
        return t

class Prog:
    ntok = 0
    def __init__(self): self.L = []
    def add(self, i): self.L.append(i); return i
    def __call__(self, mn, *ops, mods='', comment='', cond=False):
        i = I(mn, [str(o) for o in ops], mods, comment=comment); i.cond = cond
        if i.kind in ('dsr', 'dsw', 'dma', 'vld', 'vst'):
            Prog.ntok += 1; i.tok = Prog.ntok
        return self.add(i)
    def raw(self, t): return self.add(I(None, raw=t))
    def label(self, name):
        i = I(None, raw=name + ':'); i.kind = 'label'; return self.add(i)
    def wait(self, *insts):
        i = I(None, raw=''); i.kind = 'waitfor'; i.waits = [x.tok for x in insts if x is not None]
        return self.add(i)
    def waitall(self, vm=True, lgkm=True):
        i = I(None, raw=''); i.kind = 'waitall'; i.waits = (vm, lgkm); return self.add(i)
    def cond_begin(self):
        i = I(None, raw=''); i.kind = 'cond_begin'; return self.add(i)
    def cond_end(self):
        i = I(None, raw=''); i.kind = 'cond_end'; return self.add(i)
    def extend(self, other): self.L += other.L if isinstance(other, Prog) else other
    def __len__(self): return len(self.L)

def insert_waits(L):
    out = []
    vm = []
    lg = []
    def need(lst, pred):
        idx = -1
        for k, e in enumerate(lst):
            if pred(e): idx = k
        if idx < 0: return None
        return sum(1 for e in lst[idx + 1:] if not e[2]), idx
    snap = None
    for i in L:
        nv = nl = None
        if i.kind == 'cond_begin':
            snap = (list(vm), list(lg)); continue
        if i.kind == 'cond_end':
            vm, lg = snap; snap = None; continue
        if i.kind == 'waitall':
            if i.waits[0]: nv = (0, len(vm) - 1)
            if i.waits[1]: nl = (0, len(lg) - 1)
            force = True
        elif i.kind == 'waitfor':
            t = set(i.waits)
            nv = need(vm, lambda e: e[0] in t); nl = need(lg, lambda e: e[0] in t); force = False
        else:
            regs = i.rd | i.wr
            nv = need(vm, lambda e: e[1] & regs); nl = need(lg, lambda e: e[1] & regs); force = False
        parts = []
        if nv is not None:
            n = min(nv[0], 63); parts.append(f"vmcnt({n})"); vm = vm[nv[1] + 1:]
            if n < len(vm): vm = vm[len(vm) - n:] if n else []
        if nl is not None:
            n = min(nl[0], 15); parts.append(f"lgkmcnt({n})"); lg = lg[nl[1] + 1:]
            if n < len(lg): lg = lg[len(lg) - n:] if n else []
        if parts:
            out.append(I('s_waitcnt', [' '.join(parts)]))
        if i.kind in ('waitall', 'waitfor'): continue
        out.append(i)
        if i.kind in ('vld', 'dma', 'vst'): vm.append((i.tok, set(i.wr), i.cond))
        elif i.kind in ('dsr', 'dsw'): lg.append((i.tok, set(i.wr), i.cond))
        elif i.kind == 'smem': lg.append((None, set(i.wr), i.cond)); lg.append((None, set(i.wr), i.cond))
        elif i.mn == 's_waitcnt':
            m = re.search(r'vmcnt\((\d+)\)', i.ops[0])
            if m:
                n = int(m.group(1)); vm = vm[len(vm) - n:] if n and n < len(vm) else ([] if n == 0 else vm)
            m = re.search(r'lgkmcnt\((\d+)\)', i.ops[0])
            if m:
                n = int(m.group(1)); lg = lg[len(lg) - n:] if n and n < len(lg) else ([] if n == 0 else lg)
    return out

def is_sgpr(r): return r[0] == 's' and r != 'scc' or r.startswith('vcc') or r == 'm0' or r.startswith('exec')
def is_vec(r): return r[0] in 'va' and not r.startswith('vcc')

def required_gap(p, c):
    g = 0
    pv = p.kind in ('valu', 'trans')
    cv = c.kind in ('valu', 'trans')
    cmem = c.kind in ('dsr', 'dsw', 'vld', 'vst', 'dma')
    pw_vec = set(r for r in p.wr if is_vec(r)); pw_s = set(r for r in p.wr if is_sgpr(r))
    if pv:
        isdot = p.mn.startswith('v_dot')
        if c.kind == 'mfma' and pw_vec & c.rd: g = max(g, 3 if isdot else 2)
        if isdot and (pw_vec & (c.rd | c.wr)):
            if c.mn == p.mn:
                ab = set(r for o in c.ops[1:3] for r in expand(o))
                if pw_vec & ab: g = max(g, 3)
            else: g = max(g, 3)
        if p.kind == 'trans' and cv and c.kind != 'trans' and pw_vec & c.rd: g = max(g, 1)
        if p.kind == 'trans' and (c.kind == 'trans' or cmem) and pw_vec & c.rd: g = max(g, 1)
        if pw_s:
            if cv and pw_s & c.rd: g = max(g, 4 if c.mn.startswith(('v_readlane', 'v_writelane')) else 2)
            if c.kind in ('vld', 'vst', 'dma') and pw_s & c.rd: g = max(g, 5)
            if c.kind in ('salu',) and pw_s & c.rd: g = max(g, 2)
            if c.mn and c.mn.startswith('s_cbranch_vcc') and any(r.startswith('vcc') for r in pw_s): g = max(g, 5)
        if c.mn and c.mn.startswith(('v_readlane', 'v_readfirstlane')) and pw_vec & c.rd: g = max(g, 1)
        if c.mn and c.mn.startswith('v_permlane') and pw_vec & c.rd: g = max(g, 2)
        if c.mn and 'dpp' in c.mn and pw_vec & c.rd: g = max(g, 2)
        if ('sdwa' in p.mn or 'op_sel' in p.mods) and cv and pw_vec & (c.rd | c.wr): g = max(g, 1)
    if p.kind == 'mfma':
        big = '32x32' in p.mn
        d = p.wr
        if c.kind == 'mfma':
            srcc = set(expand(c.ops[3])); ab = set(expand(c.ops[1])) | set(expand(c.ops[2]))
            if d & ab: g = max(g, 12 if big else 8)
            if d & srcc and not (srcc == d and c.mn == p.mn): g = max(g, 10 if big else 6)
            if d & c.wr and not (c.wr == d and srcc == d): g = max(g, 12 if big else 8)
        elif (cv or cmem) and d & (c.rd | c.wr): g = max(g, 12 if big else 8)
        srcc = set(expand(p.ops[3]))
        if cv and srcc & c.wr: g = max(g, 7 if big else 3)
    if p.kind == 'salu' and 'm0' in p.wr and c.kind == 'dma': g = max(g, 1)
    if p.kind == 'vst' and len(p.data) >= 3 and p.data & c.wr: g = max(g, 2 if cv else 1)
    return g

def insert_nops(L, window=14):
    out = []
    hist = []
    for c in L:
        if c.kind in ('label',) or c.raw is not None:
            out.append(c)
            continue
        need = 0; dist = 0
        for p in reversed(hist):
            g = required_gap(p, c)
            if g - dist > need: need = g - dist
            dist += (int(p.ops[0]) + 1) if p.mn == 's_nop' else 1
            if dist >= window: break
        while need > 0:
            n = min(need, 16)
            nop = I('s_nop', [str(n - 1)]); out.append(nop); hist.append(nop); need -= n
        out.append(c); hist.append(c)
        if len(hist) > 40: hist = hist[-20:]
    return out

def finalize(prog):
    L = insert_waits(prog.L)
    L = insert_nops(L)
    return L

def interleave(main, side, per_gap, start=0):
    k = 0
    for gi in range(start, len(main)):
        n = per_gap(gi) if callable(per_gap) else per_gap
        for _ in range(n):
            if k >= len(side): return []
            it = side[k]; k += 1
            main[gi].extend(it if isinstance(it, list) else [it])
    return side[k:]
```

```python
import sys, math
from asmlib import *

NAME = "parallel_sum__ssm_conv_s5__glu_gated_bilinear__prompt"
MF = "v_mfma_f32_32x32x16_bf16"

class Cfg:
    stamps = False
    stop_after_p1 = False
    spin_limit = 200000

cfg = Cfg()

WS_A2 = 0
A2_RT = 176 * 2048
WS_AGG = 12 << 20
WS_FLG = (12 << 20) + (256 << 10)
WS_STAMP = 13 << 20
WS_SIZE = 16 << 20

SLOT = 16384
ABASE = 5 * SLOT
GSLOTS = [4, 0, 1, 2, 3]
MISC = 9 * SLOT
L_RTAB = MISC
L_MTAB = MISC + 512
L_SEG = MISC + 1024
L_TR = MISC + 8192
LDS_BYTES = 10 * SLOT

sX, sB, sG, sG2, sWS, sWSn, sAg, sCr, sCi, sWd, sOut, sDbg = [48 + 4 * i for i in range(12)]
pX, pLre, pLim, pBre, pBim, pCre, pCim, pLdt, pDsk, pBx, pWg, pWu, pWd, pOut, pDbg, pWs = [16 + 2 * i for i in range(16)]
s_w, s_rb, s_ct, s_cg, s_rt, s_xl, s_tmp, s_tmp2, s_m0x, s_m0g, s_gso, s_ones, s_tmp3 = 3, 4, 5, 6, 7, 8, 9, 10, 11, 12, 13, 14, 15
s_kx = 16
s_lo1, s_hi1 = 24, 25
s_spin = 26
s_st = 28
s_a2c = 96
def srd(b): return s(b, 4)

XF = 128
UR, UI = 96, 112
CACC = 32
v_lane = 1
vRG = [2, 3, 4, 5]
vGo = [6, 7, 8, 9]
vA2 = 10
v_r2 = 11
v_are, v_aim = 12, 13
v_plr, v_pli = 14, 15
v_msr, v_msi = 16, 17
v_zr, v_zi = 18, 19
vCo = [20, 21]
vWo = 22
vT = list(range(23, 32))
BACC = 0
WF = 64

stamp_n = [0]
def stamp(P, name=""):
    if not cfg.stamps: return
    k = stamp_n[0]; stamp_n[0] += 1
    assert k < 10
    P("s_memtime", s(s_st + 2 * k, 2), cond=True, comment="stamp " + name)

class Win:
    def __init__(self, regs, base): self.regs = regs; self.base = base
    def off(self, P, byte, span):
        if byte < self.base or byte + span - self.base > 65536:
            nb = byte if byte < self.base else ((byte + span - 65536 + SLOT - 1) // SLOT) * SLOT
            nb = (nb // SLOT) * SLOT
            d = nb - self.base
            for r in self.regs:
                if d > 0: P("v_add_u32", v(r), hex(d), v(r))
                else: P("v_subrev_u32", v(r), hex(-d), v(r))
            self.base = nb
        return byte - self.base

def cexp(P, dr, di, mult, t0, t1, t2):
    P("v_mul_f32", v(t0), mult, v(v_zr))
    P("v_mul_f32", v(t1), mult, v(v_zi))
    P("v_exp_f32", v(t0), v(t0))
    P("v_rndne_f32", v(t2), v(t1))
    P("v_sub_f32", v(t1), v(t1), v(t2))
    P("v_cos_f32", v(t2), v(t1))
    P("v_sin_f32", v(t1), v(t1))
    P("v_mul_f32", v(dr), v(t0), v(t2))
    P("v_mul_f32", v(di), v(t0), v(t1))

def cfma(P, dr, di, ar, ai, br, bi, cr, ci):
    P("v_fma_f32", v(dr), v(ar), v(br), v(cr))
    P("v_fma_f32", v(di), v(ar), v(bi), v(ci))
    P("v_fma_f32", v(dr), "-" + v(ai), v(bi), v(dr))
    P("v_fma_f32", v(di), v(ai), v(br), v(di))

def f32hex(x):
    import struct
    return hex(struct.unpack('<I', struct.pack('<f', x))[0])

def bf16r(P, d, src):
    P("v_cvt_pk_bf16_f32", v(d), v(src), v(src))
    P("v_and_b32", v(d), "0xffff0000", v(d))

def build():
    P = Prog()
    T = list(range(32, 96))
    if cfg.stamps: P("s_memtime", s(100, 2), cond=True)
    P("s_load_dwordx16", s(16, 16), s(0, 2), 0)
    P("s_load_dwordx16", s(32, 16), s(0, 2), 64)
    P("s_cmp_ge_u32", "s2", 256)
    P("s_cbranch_scc1", "L_end")
    P("v_lshrrev_b32", v(T[0]), 6, "v0")
    P("v_and_b32", v(v_lane), 63, "v0")
    P("v_readfirstlane_b32", s(s_w), v(T[0]))
    P("s_and_b32", s(s_tmp), "s2", 7)
    P("s_lshr_b32", s(s_tmp2), "s2", 3)
    P("s_and_b32", s(s_xl), s(s_tmp), 1)
    P("s_lshr_b32", s(s_rb), s(s_tmp), 1)
    P("s_lshl_b32", s(s_rb), s(s_rb), 2)
    P("s_and_b32", s(s_tmp3), s(s_tmp2), 3)
    P("s_add_u32", s(s_rb), s(s_rb), s(s_tmp3))
    P("s_lshr_b32", s(s_ct), s(s_tmp2), 2)
    P("s_lshl_b32", s(s_cg), s(s_xl), 3)
    P("s_add_u32", s(s_cg), s(s_cg), s(s_ct))
    P("s_lshl_b32", s(s_rt), s(s_rb), 1)
    P("s_add_u32", s(s_rt), s(s_rt), s(s_xl))
    P("s_lshl_b32", s(s_tmp3), s(s_tmp3), 1)
    P("s_add_u32", s(s_tmp3), s(s_tmp3), s(s_ct))
    l3, l4, j8, hh, k4 = T[1], T[2], T[3], T[4], T[5]
    P("v_lshrrev_b32", v(l3), 3, v(v_lane))
    P("v_lshrrev_b32", v(l4), 4, v(v_lane))
    P("v_and_b32", v(j8), 7, v(v_lane))
    P("v_lshrrev_b32", v(hh), 5, v(v_lane))
    P("v_and_b32", v(k4), 3, v(l3))
    jx = T[6]
    P("v_xor_b32", v(jx), v(j8), v(l4))
    P("v_lshlrev_b32", v(jx), 4, v(jx))
    vXo = [T[8], T[9], T[10], T[11]]
    P("v_lshl_add_u32", v(T[7]), v(hh), 4, v(k4))
    P("s_lshl_b32", s(s_tmp), s(s_rb), 2)
    P("s_add_u32", s(s_tmp), s(s_tmp), s(s_w))
    P("s_lshl_b32", s(s_tmp), s(s_tmp), 15)
    P("v_lshl_add_u32", v(vXo[0]), v(T[7]), 10, v(jx))
    P("v_add_u32", v(vXo[0]), s(s_tmp), v(vXo[0]))
    P("v_xor_b32", v(vXo[1]), 64, v(vXo[0]))
    P("v_add_u32", v(vXo[1]), "0x1000", v(vXo[1]))
    P("v_add_u32", v(vXo[2]), "0x2000", v(vXo[0]))
    P("v_add_u32", v(vXo[3]), "0x2000", v(vXo[1]))
    P("s_lshl_b32", s(s_m0x), s(s_w), 14)
    P("s_lshl_b32", s(s_m0g), s(s_w), 12)
    for b, n in ((sX, 2097152), (sB, 524288), (sG, 1835008), (sWS, WS_SIZE), (sAg, 8192), (sCr, 524288), (sCi, 524288),
                 (sWd, 1835008), (sOut, 4194304), (sDbg, 256)):
        P("s_mov_b32", s(b + 2), hex(n))
        P("s_mov_b32", s(b + 3), "0x20000")
    P("s_mov_b32", s(sG2 + 3), "0x20000")
    P("s_mov_b32", s(sWSn + 3), "0x20000")
    P("s_and_b32", s(s_tmp), s(s_cg), 3)
    P("s_cmp_eq_u32", s(s_tmp), 3)
    P("s_cselect_b32", s(sG2 + 2), 0, hex(1835008))
    P("s_cselect_b32", s(sWSn + 2), 0, hex(WS_SIZE))
    vRec, vFl = T[63], T[13]
    P("s_lshl_b32", s(s_tmp), s(s_cg), 13)
    P("s_sub_u32", s(s_tmp2), 15, s(s_rb))
    P("s_lshl_b32", s(s_tmp2), s(s_tmp2), 9)
    P("s_add_u32", s(s_tmp), s(s_tmp), s(s_tmp2))
    P("s_add_u32", s(s_tmp), s(s_tmp), hex(WS_AGG - 192 * 16 - 512))
    P("v_lshlrev_b32", v(vRec), 4, "v0")
    P("v_add_u32", v(vRec), s(s_tmp), v(vRec))
    P("v_mov_b32", v(T[14]), "0x7fffff00")
    P("v_cmp_le_u32", "vcc", "0xe0", "v0")
    P("v_cndmask_b32", v(vRec), v(T[14]), v(vRec), "vcc")
    P("v_lshrrev_b32", v(T[15]), 1, v(v_lane))
    P("v_and_b32", v(T[16]), 1, v(v_lane))
    P("v_lshlrev_b32", v(T[15]), 7, v(T[15]))
    P("v_lshl_add_u32", v(vFl), v(T[16]), 2, v(T[15]))
    P("s_lshl_b32", s(s_tmp), s(s_rb), 8)
    P("s_lshl_b32", s(s_tmp2), s(s_cg), 3)
    P("s_add_u32", s(s_tmp), s(s_tmp), s(s_tmp2))
    P("s_add_u32", s(s_a2c + 1), s(s_tmp), hex(WS_FLG))
    P("v_add_u32", v(vFl), s(s_a2c + 1), v(vFl))
    P("v_subrev_u32", v(T[15]), "0xc0", "v0")
    P("v_cmp_gt_u32", "vcc", 4, v(T[15]))
    P("v_cndmask_b32", v(vFl), v(T[14]), v(vFl), "vcc")
    vAt = T[17]
    P("s_and_b32", s(s_tmp), "s2", 3)
    P("s_lshl_b32", s(s_tmp), s(s_tmp), 6)
    P("v_mov_b32", v(vAt), s(s_tmp))
    P("v_cmp_eq_u32", "vcc", 0, v(T[15]))
    P("v_cndmask_b32", v(vAt), v(T[14]), v(vAt), "vcc")
    Z = T[20]
    assert Z % 4 == 0
    for i in range(4): P("v_mov_b32", v(Z + i), 0)
    vP = T[18]
    P("v_and_b32", v(vP), 31, v(v_lane))
    P("s_lshl_b32", s(s_tmp), s(s_cg), 5)
    P("v_add_u32", v(vP), s(s_tmp), v(vP))
    P("v_lshlrev_b32", v(vP), 1, v(vP))
    P("s_waitcnt", "lgkmcnt(0)")
    def setb(b, p):
        P("s_mov_b64", s(b, 2), s(p, 2))
    setb(sX, pX); setb(sWS, pWs)
    rs1 = P("buffer_store_dwordx4", v(Z, 4), v(vRec), srd(sWS), 0, mods="offen sc1")
    rs2 = P("buffer_store_dword", v(Z), v(vFl), srd(sWS), 0, mods="offen sc1")
    pr_re, pr_im, pr_dt = T[24], T[25], T[26]
    P("s_cmp_ge_u32", s(s_w), 2)
    P("s_cselect_b64", s(sB, 2), s(pBim, 2), s(pBre, 2))
    P("s_cselect_b64", s(sG, 2), s(pWu, 2), s(pWg, 2))
    P("global_load_ushort", v(pr_re), v(vP), s(pLre, 2))
    P("global_load_ushort", v(pr_im), v(vP), s(pLim, 2))
    P("global_load_ushort", v(pr_dt), v(vP), s(pLdt, 2))
    setb(sCr, pCre); setb(sCi, pCim)
    for q in range(8):
        P("s_add_u32", s(s_tmp), s(s_tmp3), q)
        P("s_and_b32", s(s_tmp), s(s_tmp), 7)
        P("s_lshl_b32", s(s_kx + q), s(s_tmp), 7)
    xd = {}
    def xdma(q):
        for i in range(4):
            P("s_add_u32", "m0", s(s_m0x), (q & 3) * 4096 + i * 1024)
            xd[(q, i)] = P("buffer_load_dwordx4", v(vXo[i]), srd(sX), s(s_kx + q), mods="offen lds")
    for q in range(4): xdma(q)
    setb(sG2, sG); setb(sWSn, pWs); setb(sWd, pWd); setb(sOut, pOut); setb(sDbg, pDbg)
    P("s_mov_b64", s(s_a2c + 2, 2), s(pDsk, 2))
    P("s_lshl_b32", s(s_tmp), s(s_cg), 13)
    P("s_add_u32", s(s_tmp), s(s_tmp), hex(WS_AGG))
    P("s_add_u32", s(sAg), s(pWs), s(s_tmp))
    P("s_addc_u32", s(sAg + 1), s(pWs + 1), 0)
    P("s_mov_b32", s(s_ones), "0x3f803f80")
    P("s_mov_b32", s(s_lo1), "0x00003f80")
    P("s_mov_b32", s(s_hi1), "0x3f800000")
    r31, sw = T[27], T[28]
    vRA = [T[32], T[33], T[34], T[35]]
    P("v_and_b32", v(r31), 31, v(v_lane))
    P("v_bfe_u32", v(sw), v(v_lane), 1, 3)
    P("v_xor_b32", v(sw), v(sw), v(hh))
    P("v_lshlrev_b32", v(sw), 4, v(sw))
    P("v_lshl_add_u32", v(vRA[0]), v(r31), 7, v(sw))
    P("v_add_u32", v(vRA[0]), s(s_m0x), v(vRA[0]))
    for u in range(1, 4): P("v_xor_b32", v(vRA[u]), u << 5, v(vRA[0]))
    vBo = [T[36], T[37]]
    P("s_and_b32", s(s_tmp), s(s_w), 1)
    P("s_lshl_b32", s(s_tmp), s(s_tmp), 4)
    P("s_lshl_b32", s(s_tmp2), s(s_cg), 5)
    P("s_add_u32", s(s_tmp), s(s_tmp), s(s_tmp2))
    P("s_lshl_b32", s(s_tmp), s(s_tmp), 10)
    P("v_lshl_add_u32", v(vBo[0]), v(l3), 10, v(jx))
    P("v_add_u32", v(vBo[0]), s(s_tmp), v(vBo[0]))
    P("v_xor_b32", v(vBo[1]), 64, v(vBo[0]))
    P("v_add_u32", v(vBo[1]), "0x2000", v(vBo[1]))
    P("v_and_b32", v(T[38]), 1, v(l4))
    P("v_lshlrev_b32", v(T[38]), 1, v(T[38]))
    P("s_lshr_b32", s(s_tmp), s(s_w), 1)
    P("s_lshl_b32", s(s_tmp), s(s_tmp), 2)
    P("v_xor_b32", v(T[38]), s(s_tmp), v(T[38]))
    P("v_xor_b32", v(T[38]), v(j8), v(T[38]))
    P("v_lshlrev_b32", v(T[38]), 4, v(T[38]))
    P("v_mul_u32_u24", v(vGo[0]), "0xe00", v(l3))
    P("v_add_u32", v(vGo[0]), v(vGo[0]), v(T[38]))
    P("s_lshr_b32", s(s_tmp), s(s_cg), 2)
    P("s_mul_i32", s(s_tmp), s(s_tmp), 7)
    P("s_and_b32", s(s_tmp2), s(s_cg), 3)
    P("s_lshl_b32", s(s_tmp2), s(s_tmp2), 1)
    P("s_add_u32", s(s_tmp), s(s_tmp), s(s_tmp2))
    P("s_lshl_b32", s(s_tmp), s(s_tmp), 7)
    P("s_and_b32", s(s_tmp2), s(s_w), 1)
    P("s_mul_i32", s(s_tmp2), s(s_tmp2), 32 * 3584)
    P("s_add_u32", s(s_tmp), s(s_tmp), s(s_tmp2))
    P("v_add_u32", v(vGo[0]), s(s_tmp), v(vGo[0]))
    for i in range(1, 4): P("v_add_u32", v(vGo[i]), hex(8 * i * 3584), v(vGo[0]))
    mm, rr, cc = T[39], T[40], T[41]
    P("v_and_b32", v(mm), 1, v(l4))
    P("v_bfe_u32", v(rr), v(v_lane), 2, 2)
    P("v_lshl_add_u32", v(T[42]), v(hh), 3, v(rr))
    P("v_lshlrev_b32", v(T[42]), 7, v(T[42]))
    P("v_lshl_add_u32", v(vRG[0]), v(mm), 13, v(T[42]))
    P("v_bfe_u32", v(T[43]), v(v_lane), 3, 2)
    P("v_lshl_add_u32", v(vRG[0]), v(T[43]), 5, v(vRG[0]))
    P("v_and_b32", v(cc), 1, v(v_lane))
    P("v_lshl_add_u32", v(vRG[0]), v(cc), 4, v(vRG[0]))
    P("v_bfe_u32", v(cc), v(v_lane), 1, 1)
    P("v_lshl_add_u32", v(vRG[0]), v(cc), 3, v(vRG[0]))
    P("v_add_u32", v(vRG[0]), hex(SLOT), v(vRG[0]))
    for j in range(1, 4): P("v_xor_b32", v(vRG[j]), j << 5, v(vRG[0]))
    winG = Win(vRG, SLOT)
    P("s_lshr_b32", s(s_tmp), s(s_w), 1)
    P("s_lshl_b32", s(s_tmp2), s(s_rb), 1)
    P("s_add_u32", s(s_tmp), s(s_tmp), s(s_tmp2))
    P("s_mul_i32", s(s_tmp), s(s_tmp), A2_RT)
    P("s_and_b32", s(s_tmp2), s(s_w), 1)
    P("s_lshl_b32", s(s_tmp2), s(s_tmp2), 10)
    P("s_add_u32", s(s_tmp), s(s_tmp), s(s_tmp2))
    P("s_lshr_b32", s(s_tmp2), s(s_cg), 2)
    P("s_mul_i32", s(s_tmp2), s(s_tmp2), 44 * 2048)
    P("s_add_u32", s(s_tmp), s(s_tmp), s(s_tmp2))
    P("v_lshl_add_u32", v(vA2), v(v_lane), 4, s(s_tmp))
    P("s_and_b32", s(s_tmp2), s(s_cg), 3)
    P("s_lshl_b32", s(s_a2c), s(s_tmp2), 12)
    P("s_lshl_b32", s(s_tmp), s(s_ct), 16)
    P("s_lshl_b32", s(s_tmp2), s(s_w), 8)
    P("s_add_u32", s(s_tmp), s(s_tmp), s(s_tmp2))
    P("v_lshl_add_u32", v(vCo[0]), v(l3), 10, v(jx))
    P("v_add_u32", v(vCo[0]), s(s_tmp), v(vCo[0]))
    P("v_xor_b32", v(vCo[1]), 64, v(vCo[0]))
    P("v_lshlrev_b32", v(T[44]), 2, v(mm))
    P("v_xor_b32", v(T[44]), v(j8), v(T[44]))
    P("v_lshlrev_b32", v(T[44]), 4, v(T[44]))
    P("v_lshl_add_u32", v(vWo), v(l3), 10, v(T[44]))
    P("s_mul_i32", s(s_tmp), s(s_w), 448 * 1024)
    P("s_lshl_b32", s(s_tmp2), s(s_ct), 7)
    P("s_add_u32", s(s_tmp), s(s_tmp), s(s_tmp2))
    P("v_add_u32", v(vWo), s(s_tmp), v(vWo))
    P("v_lshlrev_b32", v(T[45]), 3, "v0")
    P("v_add_u32", v(T[45]), hex(L_SEG), v(T[45]))
    P("ds_write_b64", v(T[45]), v(Z, 2))
    dt, lre, lim = T[46], T[47], T[48]
    P("v_lshlrev_b32", v(dt), 16, v(pr_dt))
    P("v_lshlrev_b32", v(lre), 16, v(pr_re))
    P("v_lshlrev_b32", v(lim), 16, v(pr_im))
    P("v_mul_f32", v(dt), f32hex(math.log2(math.e)), v(dt))
    P("v_exp_f32", v(dt), v(dt))
    bf16r(P, dt, dt)
    P("v_mul_f32", v(v_zr), v(dt), v(lre))
    P("v_mul_f32", v(v_zi), v(dt), v(lim))
    P("v_mul_f32", v(v_zr), f32hex(math.log2(math.e)), v(v_zr))
    P("v_mul_f32", v(v_zi), f32hex(-1.0 / (2 * math.pi)), v(v_zi))
    cexp(P, v_are, v_aim, "1.0", T[49], T[50], T[51])
    c2r, c2i = T[52], T[53]
    P("v_mul_f32", v(T[49]), v(lre), v(lre))
    P("v_fmac_f32", v(T[49]), v(lim), v(lim))
    P("v_rcp_f32", v(T[49]), v(T[49]))
    P("v_add_f32", v(T[50]), "-1.0", v(v_are))
    P("v_add_f32", v(T[49]), v(T[49]), v(T[49]))
    P("v_mul_f32", v(c2r), v(T[50]), v(lre))
    P("v_fma_f32", v(c2r), "-" + v(v_aim), v(lim), v(c2r))
    P("v_mul_f32", v(c2i), v(T[50]), v(lim))
    P("v_fma_f32", v(c2i), v(v_aim), v(lre), v(c2i))
    P("v_mul_f32", v(c2r), v(c2r), v(T[49]))
    P("v_mul_f32", v(c2i), v(c2i), v(T[49]))
    a16r, a16i = T[54], T[55]
    P("s_mov_b32", s(s_tmp), f32hex(16.0))
    cexp(P, a16r, a16i, s(s_tmp), T[49], T[50], T[51])
    P("v_lshrrev_b32", v(T[56]), 5, "v0")
    P("v_lshlrev_b32", v(T[57]), 4, v(T[56]))
    P("v_cvt_f32_u32", v(T[57]), v(T[57]))
    cexp(P, v_msr, v_msi, v(T[57]), T[49], T[50], T[51])

    S1a, S1b, S2a, S2b = T[58], T[59], T[60], T[61]
    for r in (S1a, S1b, S2a, S2b): P("v_mov_b32", v(r), 0)
    bd = {}
    def bdma(q):
        for i in range(2):
            P("s_lshr_b32", s(s_tmp), s(s_m0g), 1)
            P("s_add_u32", "m0", s(s_tmp), ABASE + q * 8192 + i * 1024)
            bd[(q, i)] = P("buffer_load_dwordx4", v(vBo[i]), srd(sB), s(s_kx + q), mods="offen lds")
    gd = {}
    def gdma_seq(n):
        Q = Prog(); groups = []
        q = n & 7
        for i in range(4):
            Q = Prog()
            if i == 0:
                Q("s_mul_i32", s(s_gso), s(s_kx + q), 1792)
                if n >= 8: Q("s_add_u32", s(s_gso), s(s_gso), 128)
            Q("s_add_u32", "m0", s(s_m0g), GSLOTS[n % 5] * SLOT + i * 1024)
            gd[(n, i)] = Q("buffer_load_dwordx4", v(vGo[i]), srd(sG if n < 8 else sG2), s(s_gso), mods="offen lds")
            groups.append(Q.L)
        return groups
    def xstats(q):
        P.wait(*[xd[(q, i)] for i in range(4)])
        rds = []
        for u in range(4):
            rds.append(P("ds_read_b128", v(XF + (4 * q + u) * 4, 4), v(vRA[u]), mods=f"offset:{(q & 3) * 4096}"))
        return rds
    def dots(q):
        for r in range(16):
            x = XF + q * 16 + r
            P("v_dot2c_f32_bf16", v(S1a if r & 1 else S1b), s(s_ones), v(x))
            P("v_dot2c_f32_bf16", v(S2a if r & 1 else S2b), v(x), v(x))
    for q in range(4):
        rds = xstats(q)
        if q == 0:
            P("v_mov_b32", v(T[19]), 1)
            P("buffer_atomic_add", v(T[19]), v(vAt), srd(sDbg), 0, mods="offen sc1")
        P.wait(*rds)
        xdma(q + 4)
        if q == 3:
            for qq in range(8): bdma(qq)
            for g in gdma_seq(0): P.extend(g)
        dots(q)
    stamp(P, "x half")
    for q in range(4, 8):
        xstats(q)
        dots(q)
    stamp(P, "x done")
    P("v_add_f32", v(S1a), v(S1a), v(S1b))
    P("v_add_f32", v(S2a), v(S2a), v(S2b))
    P("v_mov_b32", v(S1b), v(S1a))
    P("v_mov_b32", v(S2b), v(S2a))
    P("v_permlane32_swap_b32", v(S1a), v(S1b))
    P("v_permlane32_swap_b32", v(S2a), v(S2b))
    P("v_add_f32", v(S1a), v(S1a), v(S1b))
    P("v_add_f32", v(S2a), v(S2a), v(S2b))
    P("v_mul_f32", v(S1a), f32hex(1.0 / 512), v(S1a))
    v_nm = T[62]
    bf16r(P, S1b, S1a)
    P("v_sub_f32", v(v_nm), 0, v(S1b))
    P("v_mul_f32", v(S2a), f32hex(1.0 / 512), v(S2a))
    P("v_fma_f32", v(S2a), "-" + v(S1a), v(S1a), v(S2a))
    P("v_max_f32", v(S2a), 0, v(S2a))
    bf16r(P, S2a, S2a)
    P("v_add_f32", v(S2a), f32hex(1e-5), v(S2a))
    bf16r(P, S2a, S2a)
    P("v_sqrt_f32", v(S2a), v(S2a))
    bf16r(P, S2a, S2a)
    P("v_rcp_f32", v(S2a), v(S2a))
    P("v_mul_f32", v(v_r2), v(S2a), v(S2a))
    P("v_bfe_u32", v(T[49]), v(v_lane), 2, 1)
    P("v_bfe_u32", v(T[50]), v(v_lane), 3, 2)
    P("v_and_b32", v(T[51]), 3, v(v_lane))
    P("v_lshl_add_u32", v(T[51]), v(T[49]), 4, v(T[51]))
    P("v_lshl_add_u32", v(T[51]), v(T[50]), 2, v(T[51]))
    P("v_lshl_add_u32", v(T[51]), v(hh), 7, v(T[51]))
    P("s_lshl_b32", s(s_tmp), s(s_w), 7)
    P("s_add_u32", s(s_tmp), s(s_tmp), hex(L_RTAB))
    P("v_lshl_add_u32", v(T[51]), v(T[51]), 2, s(s_tmp))
    P("v_cmp_le_u32", "vcc", 32, v(v_lane))
    P("v_cndmask_b32", v(S2b), v(S2a), v(S1b), "vcc")
    P("ds_write_b32", v(T[51]), v(S2b))
    for u in range(4):
        P("v_subrev_u32", v(vRA[u]), s(s_m0x), v(vRA[u]))
        P("v_add_u32", v(vRA[u]), hex(ABASE), v(vRA[u]))

    def center(Q, ks):
        t = [vT[0], vT[1], vT[2], vT[3], vT[4], vT[5], vT[6], vT[7]]
        for r in range(4):
            x = XF + ks * 4 + r
            Q("v_dot2_f32_bf16", v(t[2 * r]), v(x), s(s_lo1), v(v_nm))
            Q("v_dot2_f32_bf16", v(t[2 * r + 1]), v(x), s(s_hi1), v(v_nm))
        for r in range(4):
            x = XF + ks * 4 + r
            Q("v_cvt_pk_bf16_f32", v(x), v(t[2 * r]), v(t[2 * r + 1]))
    def a_reads(Q, ks):
        q, u = ks >> 2, ks & 3
        b = WF + (ks & 3) * 8
        Q("ds_read_b128", a(b, 4), v(vRA[u]), mods=f"offset:{q * 8192}")
        Q("ds_read_b128", a(b + 4, 4), v(vRA[u]), mods=f"offset:{q * 8192 + 4096}")
    center(P, 0)
    P.wait(*[bd[(q, i)] for q in range(4) for i in range(2)])
    P.waitall(vm=False, lgkm=True)
    P("s_barrier")
    stamp(P, "passA start")
    a_reads(P, 0); a_reads(P, 1)
    gq = []
    for n in range(1, 5): gq += gdma_seq(n)
    for ks in range(32):
        b = WF + (ks & 3) * 8
        if ks == 14:
            P.wait(*[bd[(q, i)] for q in range(4, 8) for i in range(2)])
            P("s_barrier")
        if ks + 2 < 32: a_reads(P, ks + 2)
        C = Prog()
        if ks + 1 < 32: center(C, ks + 1)
        xs = v(XF + ks * 4, 4)
        P(MF, v(UR, 16), xs, a(b, 4), "0" if ks == 0 else v(UR, 16))
        P.extend(C.L[:6])
        if gq: P.extend(gq.pop(0))
        P(MF, v(UI, 16), xs, a(b + 4, 4), "0" if ks == 0 else v(UI, 16))
        P.extend(C.L[6:])
    stamp(P, "passA end")

    def g_reads(Q, n, u, j):
        b = WF + (((u & 1) * 4 + j) * 4)
        o = winG.off(Q, GSLOTS[n % 5] * SLOT, SLOT)
        Q("ds_read_b64_tr_b16", a(b, 2), v(vRG[j]), mods=f"offset:{o + 2048 * u}")
        Q("ds_read_b64_tr_b16", a(b + 2, 2), v(vRG[j]), mods=f"offset:{o + 2048 * u + 512}")

    b2d = {}
    def b2dma_seq(n, slot):
        groups = []
        for i in range(4):
            Q = Prog()
            if n < 8:
                mmx, kc, dtl = n >> 2, (n >> 1) & 1, n & 1
                so = (32 * dtl + 8 * i) * 1024 + 128 * kc
                sr, vo = (sCi if mmx else sCr), vCo[i & 1]
            else:
                so = (32 * (n - 8) + 8 * i) * 1024
                sr, vo = sWd, vWo
            Q("s_mov_b32", s(s_tmp2), so)
            Q("s_add_u32", "m0", s(s_m0g), slot * SLOT + i * 1024)
            b2d[(n, i)] = Q("buffer_load_dwordx4", v(vo), srd(sr), s(s_tmp2), mods="offen lds")
            groups.append(Q.L)
        return groups
    b2slot = {}

    gaps = []
    P.wait(*[gd[(0, i)] for i in range(4)])
    P("s_barrier")
    for j in range(4): g_reads(P, 0, 0, j)
    bar_at = {}
    for n in range(16):
        for u in range(4):
            for j in range(4):
                Q = Prog()
                if u == 3 and j == 0 and n + 1 < 16:
                    Q.wait(*[gd[(n + 1, i)] for i in range(4)])
                    Q.add(I(None, raw='')).kind = 'barmark'
                    Q("s_barrier")
                    bar_at[n + 1] = len(gaps)
                nn, uu = (n, u + 1) if u < 3 else (n + 1, 0)
                if nn < 16: g_reads(Q, nn, uu, j)
                b = WF + (((u & 1) * 4 + j) * 4)
                ks = (n & 7) * 4 + u
                if n < 8: acc = a(BACC + 16 * j, 16)
                else: acc = v(CACC + 16 * j, 16)
                Q(MF, acc, a(b, 4), v(XF + ks * 4, 4), "0" if ks == 0 else acc)
                gaps.append(Q.L)
        if n >= 1 and n + 4 < 16:
            grp = gdma_seq(n + 4)
            base = bar_at[n + 1]
            for i, g in enumerate(grp): gaps[base + i].extend(g)

    S = Prog()
    RT = T[0]
    P_addr = vT[8]
    S("s_lshl_b32", s(s_tmp), s(s_w), 7)
    S("s_add_u32", s(s_tmp), s(s_tmp), hex(L_RTAB))
    S("v_lshrrev_b32", v(P_addr), 5, v(v_lane))
    S("v_lshl_add_u32", v(P_addr), v(P_addr), 6, s(s_tmp))
    for i in range(4): S("ds_read_b128", v(RT + 4 * i, 4), v(P_addr), mods=f"offset:{16 * i}")
    er, ei, e2r, e2i = T[16], T[17], T[18], T[19]
    for r in range(16):
        S("v_mul_f32", v(UR + r), v(RT + r), v(UR + r))
        S("v_mul_f32", v(UI + r), "-" + v(RT + r), v(UI + r))
        if r == 0: continue
        pr, pi = (UR, UI) if r == 1 else ((er, ei) if r & 1 else (e2r, e2i))
        dr, di = (e2r, e2i) if r & 1 else (er, ei)
        cfma(S, dr, di, v_are, v_aim, pr, pi, UR + r, UI + r)
    EP = T[22]
    assert EP % 2 == 0
    S("v_mul_f32", v(EP), v(c2r), v(e2r))
    S("v_mul_f32", v(EP + 1), v(c2r), v(e2i))
    S("v_fma_f32", v(EP), "-" + v(c2i), v(e2i), v(EP))
    S("v_fma_f32", v(EP + 1), v(c2i), v(e2r), v(EP + 1))
    S("v_lshlrev_b32", v(P_addr), 3, "v0")
    S("v_add_u32", v(P_addr), hex(L_SEG), v(P_addr))
    segw = S("ds_write_b64", v(P_addr), v(EP, 2), mods=f"offset:{7 * 256}")
    rest = interleave(gaps, S.L, 3, start=1)
    assert not rest
    endg = max(i for i, g in enumerate(gaps) if segw in g)
    nb = min(b for b in bar_at.values() if b > endg)
    for k, ins in enumerate(gaps[nb]):
        if ins.kind == 'barmark':
            W = Prog(); W.wait(segw); gaps[nb][k] = W.L[0]
    S = Prog()
    SG = T[0]
    for jj in range(7):
        S("ds_read_b64", v(SG + 2 * jj, 2), v(P_addr), mods=f"offset:{jj * 256}")
    for jj in range(1, 7):
        dr, di = (SG + 2 * jj, SG + 2 * jj + 1) if jj < 6 else (v_plr, v_pli)
        cfma(S, dr, di, a16r, a16i, SG + 2 * jj - 2, SG + 2 * jj - 1, SG + 2 * jj, SG + 2 * jj + 1)
    REC = T[16]
    assert REC % 4 == 0
    cfma(S, REC, REC + 2, a16r, a16i, v_plr, v_pli, EP, EP + 1)
    S("v_mov_b32", v(REC + 1), 1)
    S("v_mov_b32", v(REC + 3), 1)
    S("buffer_store_dwordx4", v(REC, 4), v(vRec), srd(sWS), 0, mods="offen sc1")
    for r in range(16):
        t0 = vT[r & 3]
        S("v_mul_f32", v(t0), v(c2i), v(UI + r))
        S("v_mul_f32", v(UI + r), v(c2r), v(UI + r))
        S("v_fma_f32", v(UI + r), v(c2i), v(UR + r), v(UI + r))
        S("v_fma_f32", v(UR + r), v(c2r), v(UR + r), "-" + v(t0))
    rest = interleave(gaps, S.L, 3, start=nb)
    assert not rest
    endS1 = max(i for i, g in enumerate(gaps) if S.L[-1] in g)
    assert endS1 < 126, endS1

    grp = []
    for n in range(4):
        b2slot[n] = 5 + n
        grp += b2dma_seq(n, 5 + n)
    gi = 68
    for g in grp:
        gaps[gi].extend(g); gi += 4 if (gi % 16) < 8 else 12
    for n in range(12, 15):
        un = 4 + (n - 12)
        sl = GSLOTS[(n - 1) % 5]
        b2slot[un] = sl
        for i, g in enumerate(b2dma_seq(un, sl)): gaps[bar_at[n + 1] + i].extend(g)

    def h_epi(S, accf, j, srdx, soff_reg, tmp, fromagpr):
        O = tmp[0]
        for e in range(0, 8, 2):
            t0, t1, t2, t3 = tmp[4], tmp[5], tmp[6], tmp[7]
            if fromagpr:
                S("v_accvgpr_read_b32", v(t0), a(accf + 16 * j + e))
                S("v_accvgpr_read_b32", v(t1), a(accf + 16 * j + e + 1))
                S("v_accvgpr_read_b32", v(t2), a(accf + 16 * j + 8 + e))
                S("v_accvgpr_read_b32", v(t3), a(accf + 16 * j + 8 + e + 1))
                g0, g1, u0, u1 = t0, t1, t2, t3
            else:
                g0, g1, u0, u1 = accf + 16 * j + e, accf + 16 * j + e + 1, accf + 16 * j + 8 + e, accf + 16 * j + 9 + e
            S("v_mul_f32", v(g0), v(v_r2), v(g0))
            S("v_mul_f32", v(g1), v(v_r2), v(g1))
            S("v_mul_f32", v(g0), v(g0), v(u0))
            S("v_mul_f32", v(g1), v(g1), v(u1))
            S("v_cvt_pk_bf16_f32", v(O + e // 2), v(g0), v(g1))
        return S("buffer_store_dwordx4", v(O, 4), v(vA2), srd(srdx), s(soff_reg), mods=f"offen offset:{(j & 1) * 2048} sc1")
    all_st = []
    S = Prog()
    tmpE = [24, 25, 26, 27, 28, 29, 30, 31]
    for j in range(4):
        if j % 2 == 0:
            S("s_lshl_b32", s(s_tmp), s(s_a2c), 2)
            S("s_add_u32", s(s_tmp), s(s_tmp), 16 * 2048 + j * 2048)
        all_st.append(h_epi(S, BACC, j, sWS, s_tmp, tmpE, True))
    rest = interleave(gaps, S.L, 3, start=129)
    assert not rest
    endS2 = max(i for i, g in enumerate(gaps) if S.L[-1] in g)

    S = Prog()
    D = XF
    st3 = max(endS2 + 1, 128 + 4 * 12)
    hs, gaddr = D + 32, D + 33
    a128r, a128i, a256r, a256i = D + 34, D + 35, D + 36, D + 37
    tg = D + 38
    def gather(Q):
        for i in range(8):
            Q("buffer_load_dwordx4", v(D + 4 * i, 4), v(gaddr), srd(sAg), s(s_tmp3) if i >= 4 else 0, mods=f"offen offset:{(i & 3) * 1024} sc1")
    def check(Q):
        Q("v_add3_u32", v(tg), v(D + 1), v(D + 3), v(D + 5))
        for i in range(1, 7):
            Q("v_add3_u32", v(tg), v(tg), v(D + 4 * i + 3), v(D + 4 * i + 5))
        Q("v_add_u32", v(tg), v(tg), v(D + 31))
        Q("v_cmp_ne_u32", "vcc", v(tg), v(D + 40))
    H = Prog()
    H("v_and_b32", v(D + 1), 3, v(v_lane))
    H("v_lshlrev_b32", v(D + 1), 6, v(D + 1))
    H("buffer_load_dword", v(D), v(D + 1), srd(sDbg), 0, mods="offen sc1")
    gaps[st3 - 24].extend(H.L)
    H = Prog()
    H("v_cmp_ne_u32", "vcc", 64, v(D))
    H("s_cbranch_vccz", "L_hs_ok")
    H.cond_begin()
    H("s_mov_b32", s(s_spin), cfg.spin_limit)
    H.label("L_hs_spin")
    H("s_sleep", 2)
    H("buffer_load_dword", v(D), v(D + 1), srd(sDbg), 0, mods="offen sc1")
    H("s_waitcnt", "vmcnt(0)")
    H("v_cmp_ne_u32", "vcc", 64, v(D))
    H("s_sub_u32", s(s_spin), s(s_spin), 1)
    H("s_cmp_eq_u32", s(s_spin), 0)
    H("s_cbranch_scc1", "L_hs_ok")
    H("s_cbranch_vccnz", "L_hs_spin")
    H.cond_end()
    H.label("L_hs_ok")
    gaps[st3 - 1].extend(H.L)
    S("s_sub_u32", s(s_tmp), 16, s(s_rb))
    S("s_lshl_b32", s(s_tmp), s(s_tmp), 9)
    S("v_lshl_add_u32", v(gaddr), v(v_lane), 4, s(s_tmp))
    S("s_mov_b32", s(s_tmp3), 4096)
    gather(S)
    S("v_lshrrev_b32", v(D + 40), 5, v(v_lane))
    S("v_sub_u32", v(D + 40), s(s_rb), v(D + 40))
    S("v_add_u32", v(D + 40), 1, v(D + 40))
    S("v_and_b32", v(D + 40), -2, v(D + 40))
    S("s_mov_b32", s(s_tmp), f32hex(128.0))
    cexp(S, a128r, a128i, s(s_tmp), D + 41, D + 42, D + 43)
    S("s_mov_b32", s(s_tmp), f32hex(256.0))
    cexp(S, a256r, a256i, s(s_tmp), D + 41, D + 42, D + 43)
    pre = S.L
    rest = interleave(gaps, pre, 3, start=st3)
    assert not rest
    e1 = max(i for i, g in enumerate(gaps) if pre[-1] in g)
    S = Prog()
    check(S)
    S("s_cbranch_vccz", "L_carry_ok")
    S.cond_begin()
    S("s_mov_b32", s(s_spin), cfg.spin_limit)
    S.label("L_carry_spin")
    S("s_sleep", 2)
    gather(S)
    S("s_waitcnt", "vmcnt(0)")
    check(S)
    S("s_sub_u32", s(s_spin), s(s_spin), 1)
    S("s_cmp_eq_u32", s(s_spin), 0)
    S("s_cbranch_scc1", "L_carry_ok")
    S("s_cbranch_vccnz", "L_carry_spin")
    S.cond_end()
    S.label("L_carry_ok")
    chk_gap = e1 + 10
    gaps[chk_gap].extend(S.L)
    S = Prog()
    for i in range(6, -1, -1):
        cfma(S, D + 4 * i, D + 4 * i + 2, a256r, a256i, D + 4 * i + 4, D + 4 * i + 6, D + 4 * i, D + 4 * i + 2)
    S("v_mov_b32", v(D + 4), v(D + 0))
    S("v_mov_b32", v(D + 6), v(D + 2))
    S("v_permlane32_swap_b32", v(D + 0), v(D + 4))
    S("v_permlane32_swap_b32", v(D + 2), v(D + 6))
    cfma(S, D + 0, D + 2, a128r, a128i, D + 4, D + 6, D + 0, D + 2)
    cfma(S, v_plr, v_pli, v_msr, v_msi, D + 0, D + 2, v_plr, v_pli)
    for r in range(16):
        pr, pi = (v_plr, v_pli) if r == 0 else (UR + r - 1, UI + r - 1)
        cfma(S, UR + r, UI + r, v_are, v_aim, pr, pi, UR + r, UI + r)
    wad, rad = D + 8, D + 9
    S("v_and_b32", v(wad), 31, v(v_lane))
    S("v_lshlrev_b32", v(wad), 6, v(wad))
    S("v_lshrrev_b32", v(rad), 5, v(v_lane))
    S("v_lshl_add_u32", v(wad), v(rad), 5, v(wad))
    S("s_lshl_b32", s(s_tmp), s(s_w), 11)
    S("s_add_u32", s(s_tmp), s(s_tmp), hex(L_TR))
    S("v_add_u32", v(wad), s(s_tmp), v(wad))
    S("v_bfe_u32", v(D + 10), v(v_lane), 2, 2)
    S("v_lshl_add_u32", v(rad), v(rad), 3, v(D + 10))
    S("v_lshlrev_b32", v(rad), 6, v(rad))
    S("v_and_b32", v(D + 10), 1, v(v_lane))
    S("v_lshl_add_u32", v(rad), v(D + 10), 5, v(rad))
    S("v_and_b32", v(D + 10), 16, v(v_lane))
    S("v_add_u32", v(rad), v(rad), v(D + 10))
    S("v_bfe_u32", v(D + 10), v(v_lane), 1, 1)
    S("v_lshl_add_u32", v(rad), v(D + 10), 3, v(rad))
    S("v_add_u32", v(rad), s(s_tmp), v(rad))
    for part, U in enumerate((UR, UI)):
        PK = D + 12 + part * 8
        FR = D + 28 + part * 8
        for r in range(8): S("v_cvt_pk_bf16_f32", v(PK + r), v(U + 2 * r), v(U + 2 * r + 1))
        S("ds_write_b128", v(wad), v(PK, 4))
        S("ds_write_b128", v(wad), v(PK + 4, 4), mods="offset:16")
        for kk in range(2):
            for e in range(2):
                S("ds_read_b64_tr_b16", v(FR + 4 * kk + 2 * e, 2), v(rad), mods=f"offset:{(16 * kk + 4 * e) * 64}")
    for part in range(2):
        FR = D + 28 + part * 8
        S("s_add_u32", s(s_tmp), s(s_a2c), part * 8 * 2048)
        for kk in range(2):
            all_st.append(S("buffer_store_dwordx4", v(FR + 4 * kk, 4), v(vA2), srd(sWS), s(s_tmp), mods=f"offen offset:{kk * 2048} sc1"))
    rest = interleave(gaps, S.L, 3, start=chk_gap + 1)
    for gi, g in enumerate(gaps):
        if gi == 128: stamp(P, "passB end")
        P.extend([i for i in g if i.kind != 'barmark'])
    P.extend(rest)
    print("S1 end", endS1, "S2 end", endS2, "S3 start", st3, "chk", chk_gap, "leftover", len(rest), file=sys.stderr)
    stamp(P, "passC end")
    tmpE2 = [[XF + 64 + 8 * j + i for i in range(8)] for j in range(4)]
    for j in range(4):
        if j % 2 == 0:
            P("s_lshl_b32", s(s_tmp), s(s_a2c), 2)
            P("s_add_u32", s(s_tmp), s(s_tmp), 20 * 2048 + j * 2048)
        all_st.append(h_epi(P, CACC, j, sWSn, s_tmp, tmpE2[j], False))

    P.waitall(vm=False, lgkm=True)
    P("s_barrier")
    for k, n in enumerate((14, 15)):
        un = 7 + k; sl = GSLOTS[n % 5]; b2slot[un] = sl
        for g in b2dma_seq(un, sl): P.extend(g)

    if not cfg.stop_after_p1:
        phase2(P, all_st, b2dma_seq, b2d, b2slot)
    else:
        P.waitall()
    finish(P)
    return P

def phase2(P, all_st, b2dma_seq, b2d, b2slot):
    pool = [a(96 + 4 * i, 4) for i in range(40)] + [v(128 + 4 * i, 4) for i in range(32)]
    NA = 20
    AB = 32
    BASE = 112
    t = list(range(2, 10)) + list(range(12, 20)) + list(range(23, 32))
    vRA = t[0:4]; vRW = t[4:6]; vAl = t[6]; vFlag = t[7]; vPoll = t[8]
    hh, r31, sw, rr = t[9], t[10], t[11], t[12]
    P("v_lshrrev_b32", v(hh), 5, v(v_lane))
    P("v_and_b32", v(r31), 31, v(v_lane))
    P("v_bfe_u32", v(sw), v(v_lane), 1, 3)
    P("v_xor_b32", v(sw), v(sw), v(hh))
    P("v_lshlrev_b32", v(sw), 4, v(sw))
    P("v_lshl_add_u32", v(vRA[0]), v(r31), 7, v(sw))
    P("v_add_u32", v(vRA[0]), s(s_m0g), v(vRA[0]))
    P("v_add_u32", v(vRA[0]), hex(5 * SLOT), v(vRA[0]))
    for u in range(1, 4): P("v_xor_b32", v(vRA[u]), u << 5, v(vRA[0]))
    winA = Win(vRA, 5 * SLOT)
    P("v_bfe_u32", v(rr), v(v_lane), 2, 2)
    P("v_lshl_add_u32", v(vRW[0]), v(hh), 3, v(rr))
    P("v_lshlrev_b32", v(vRW[0]), 7, v(vRW[0]))
    P("v_bfe_u32", v(rr), v(v_lane), 3, 1)
    P("v_lshl_add_u32", v(vRW[0]), v(rr), 6, v(vRW[0]))
    P("v_bfe_u32", v(rr), v(v_lane), 4, 1)
    P("v_lshl_add_u32", v(vRW[0]), v(rr), 5, v(vRW[0]))
    P("v_and_b32", v(rr), 3, v(v_lane))
    P("v_lshl_add_u32", v(vRW[0]), v(rr), 3, v(vRW[0]))
    P("v_add_u32", v(vRW[0]), s(s_m0g), v(vRW[0]))
    P("v_xor_b32", v(vRW[1]), 64, v(vRW[0]))
    winW = Win(vRW, 0)
    P("s_mul_i32", s(s_tmp), s(s_rt), A2_RT)
    P("s_mul_i32", s(s_tmp3), s(s_w), 44 * 2048)
    P("s_add_u32", s(s_tmp), s(s_tmp), s(s_tmp3))
    P("v_lshl_add_u32", v(vAl), v(v_lane), 4, s(s_tmp))
    P("s_lshr_b32", s(s_tmp), s(s_w), 1)
    P("s_lshl_b32", s(s_tmp), s(s_tmp), 7)
    P("s_and_b32", s(s_tmp3), s(s_w), 1)
    P("s_lshl_b32", s(s_tmp3), s(s_tmp3), 2)
    P("s_add_u32", s(s_tmp), s(s_tmp), s(s_tmp3))
    P("s_add_u32", s(s_tmp), s(s_tmp), s(s_a2c + 1))
    P("v_mov_b32", v(vFlag), "0x7fffff00")
    P("v_mov_b32", v(rr), s(s_tmp))
    P("v_cmp_eq_u32", "vcc", 0, v(v_lane))
    P("v_cndmask_b32", v(vFlag), v(vFlag), v(rr), "vcc")
    P("s_lshl_b32", s(s_tmp), s(s_rt), 7)
    P("s_lshl_b32", s(s_tmp3), s(s_w), 5)
    P("s_add_u32", s(s_tmp), s(s_tmp), s(s_tmp3))
    P("s_add_u32", s(s_tmp), s(s_tmp), hex(WS_FLG))
    P("v_and_b32", v(vPoll), 7, v(v_lane))
    P("v_lshl_add_u32", v(vPoll), v(vPoll), 2, s(s_tmp))
    one = t[13]
    P("v_mov_b32", v(one), 1)

    frag = {}
    free = list(pool)
    def unit_reads(Q, n):
        sl = b2slot[n]
        Q.wait(*[b2d[(n, i)] for i in range(4)])
        rds = []
        if n < 8:
            mmx, kc, dtl = n >> 2, (n >> 1) & 1, n & 1
            o = winA.off(Q, sl * SLOT, SLOT)
            for u in range(4):
                r = free.pop(0); frag[(mmx * 8 + kc * 4 + u, dtl)] = r
                rds.append(Q("ds_read_b128", r, v(vRA[u]), mods=f"offset:{o}"))
        else:
            o = winW.off(Q, sl * SLOT, SLOT)
            for u in range(2):
                for dtl in range(2):
                    r = free.pop(0); frag[(16 + 2 * (n - 8) + u, dtl)] = r
                    f, lo = r[0], int(r[2:r.index(':')])
                    for e in range(2):
                        rds.append(Q("ds_read_b64_tr_b16", R(f, lo + 2 * e, 2), v(vRW[dtl]), mods=f"offset:{o + 2048 * u + 512 * e}"))
        return rds
    nxt = 9
    def drain_refill(Q, n):
        nonlocal nxt
        rds = unit_reads(Q, n)
        if nxt < 22:
            Q.wait(*rds)
            b2slot[nxt] = b2slot[n]
            for g in b2dma_seq(nxt, b2slot[n]): Q.extend(g)
            nxt += 1
    for n in range(0, 4): drain_refill(P, n)
    xo, l4 = t[14], t[15]
    XR = AB + 64
    P("v_lshrrev_b32", v(l4), 4, v(v_lane))
    P("v_and_b32", v(rr), 15, v(v_lane))
    P("s_lshl_b32", s(s_tmp), s(s_rt), 2)
    P("s_add_u32", s(s_tmp), s(s_tmp), s(s_w))
    P("s_lshl_b32", s(s_tmp), s(s_tmp), 4)
    P("v_add_u32", v(xo), s(s_tmp), v(l4))
    P("v_lshlrev_b32", v(xo), 10, v(xo))
    P("v_lshl_add_u32", v(xo), v(rr), 3, v(xo))
    P("s_lshl_b32", s(s_tmp), s(s_ct), 7)
    P("v_add_u32", v(xo), s(s_tmp), v(xo))
    for z in range(4):
        P("s_mov_b32", s(s_tmp3), 4096 * z)
        P("buffer_load_dwordx2", v(XR + 2 * z, 2), v(xo), srd(sX), s(s_tmp3), mods="offen")
    P("v_lshl_add_u32", v(t[16]), v(rr), 3, s(s_tmp))
    P("global_load_dwordx2", v(XR + 8, 2), v(t[16]), s(s_a2c + 2, 2))
    P.wait(*all_st)
    stamp(P, "stores acked")
    P("buffer_store_dword", v(one), v(vFlag), srd(sWS), 0, mods="offen sc1")
    pl = P("buffer_load_dword", v(t[17]), v(vPoll), srd(sWS), 0, mods="offen sc1")
    for n in range(4, 9): drain_refill(P, n)
    P("s_lshl_b32", s(s_tmp), s(s_xl), 2)
    P("s_add_u32", s(s_tmp), s(s_tmp), s(s_w))
    P("s_lshl_b32", s(s_tmp), s(s_tmp), 6)
    P("s_add_u32", s(s_tmp), s(s_tmp), hex(L_RTAB))
    P("v_lshl_add_u32", v(t[16]), v(l4), 2, s(s_tmp))
    SR = AB + 48
    for z in range(4):
        P("ds_read_b32", v(SR + z), v(t[16]), mods=f"offset:{16 * z}")
        P("ds_read_b32", v(SR + 4 + z), v(t[16]), mods=f"offset:{512 + 16 * z}")
    DS = AB + 56
    P("v_lshlrev_b32", v(DS), 16, v(XR + 8))
    P("v_and_b32", v(DS + 1), "0xffff0000", v(XR + 8))
    P("v_lshlrev_b32", v(DS + 2), 16, v(XR + 9))
    P("v_and_b32", v(DS + 3), "0xffff0000", v(XR + 9))
    for z in range(4):
        for hlf in range(2):
            b0, b1 = BASE + 4 * z + 2 * hlf, BASE + 4 * z + 2 * hlf + 1
            x = XR + 2 * z + hlf
            q0, q1 = AB + 60, AB + 61
            P("v_lshlrev_b32", v(b0), 16, v(x))
            P("v_and_b32", v(b1), "0xffff0000", v(x))
            P("v_sub_f32", v(q0), v(b0), v(SR + 4 + z))
            P("v_sub_f32", v(q1), v(b1), v(SR + 4 + z))
            P("v_cvt_pk_bf16_f32", v(q1), v(q0), v(q1))
            P("v_lshlrev_b32", v(q0), 16, v(q1))
            P("v_and_b32", v(q1), "0xffff0000", v(q1))
            P("v_mul_f32", v(q0), v(q0), v(SR + z))
            P("v_mul_f32", v(q1), v(q1), v(SR + z))
            P("v_cvt_pk_bf16_f32", v(q1), v(q0), v(q1))
            P("v_lshlrev_b32", v(q0), 16, v(q1))
            P("v_and_b32", v(q1), "0xffff0000", v(q1))
            P("v_mul_f32", v(q0), v(q0), v(DS + 2 * hlf))
            P("v_mul_f32", v(q1), v(q1), v(DS + 2 * hlf + 1))
            P("v_cvt_pk_bf16_f32", v(q1), v(q0), v(q1))
            P("v_lshlrev_b32", v(q0), 16, v(q1))
            P("v_and_b32", v(q1), "0xffff0000", v(q1))
            P("v_add_f32", v(b0), v(b0), v(q0))
            P("v_add_f32", v(b1), v(b1), v(q1))
    P("v_cmp_ne_u32", "vcc", 1, v(t[17]))
    P("s_cbranch_vccz", "L_p2_ok")
    P.cond_begin()
    P("s_mov_b32", s(s_spin), cfg.spin_limit)
    P.label("L_p2_spin")
    P("buffer_load_dword", v(t[17]), v(vPoll), srd(sWS), 0, mods="offen sc1")
    P("s_waitcnt", "vmcnt(0)")
    P("v_cmp_ne_u32", "vcc", 1, v(t[17]))
    P("s_sub_u32", s(s_spin), s(s_spin), 1)
    P("s_cmp_eq_u32", s(s_spin), 0)
    P("s_cbranch_scc1", "L_p2_ok")
    P("s_cbranch_vccnz", "L_p2_spin")
    P.cond_end()
    P.label("L_p2_ok")
    stamp(P, "flags ok")
    def aload(Q, ks):
        b = AB + ((2 * ks) % NA) * 4
        if ks % 2 == 0: Q("s_mov_b32", s(s_tmp3), ks * 2048)
        o = (ks & 1) * 2048
        Q("buffer_load_dwordx4", v(b, 4), v(vAl), srd(sWS), s(s_tmp3), mods=f"offen offset:{o} sc1")
        Q("buffer_load_dwordx4", v(b + 4, 4), v(vAl), srd(sWS), s(s_tmp3), mods=f"offen offset:{o + 1024} sc1")
    PF = NA // 2
    for ks in range(PF): aload(P, ks)
    un = 9
    for ks in range(44):
        if un < 22 and len(free) >= 4 and (ks % 1 == 0):
            drain_refill(P, un); un += 1
        b = AB + ((2 * ks) % NA) * 4
        for dtl in range(2):
            for tt in range(2):
                acc = a(BACC + 16 * (2 * tt + dtl), 16)
                P(MF, acc, frag[(ks, dtl)], v(b + 4 * tt, 4), "0" if ks == 0 else acc)
        free.append(frag[(ks, 0)]); free.append(frag[(ks, 1)])
        if ks + PF < 44: aload(P, ks + PF)
    assert un == 22
    stamp(P, "p2 mfma end")
    wa, ra = t[0], t[1]
    P("v_mul_u32_u24", v(wa), 528, v(hh))
    P("v_lshl_add_u32", v(wa), v(r31), 4, v(wa))
    P("s_mul_i32", s(s_tmp), s(s_w), 16896)
    P("v_add_u32", v(wa), s(s_tmp), v(wa))
    P("v_and_b32", v(rr), 15, v(v_lane))
    P("v_mul_u32_u24", v(ra), 528, v(rr))
    P("v_lshl_add_u32", v(ra), v(l4), 4, v(ra))
    P("s_lshr_b32", s(s_tmp), s(s_w), 1)
    P("s_mul_i32", s(s_tmp), s(s_tmp), 8448)
    P("s_and_b32", s(s_tmp3), s(s_w), 1)
    P("s_lshl_b32", s(s_tmp3), s(s_tmp3), 6)
    P("s_add_u32", s(s_tmp), s(s_tmp), s(s_tmp3))
    P("v_add_u32", v(ra), s(s_tmp), v(ra))
    P("v_lshlrev_b32", v(xo), 1, v(xo))
    P.waitall(vm=False, lgkm=True)
    P("s_barrier")
    for tt in range(2):
        for dtl in range(2):
            for q in range(4):
                P("ds_write_b128", v(wa), a(BACC + 16 * (2 * tt + dtl) + 4 * q, 4), mods=f"offset:{tt * 8448 + (dtl * 8 + 2 * q) * 528}")
    P.waitall(vm=False, lgkm=True)
    P("s_barrier")
    RB = 128
    for z in range(4):
        for kw in range(4):
            P("ds_read_b128", v(RB + (z * 4 + kw) * 4, 4), v(ra), mods=f"offset:{kw * 16896 + z * 128}")
    for z in range(4):
        for kw in range(4):
            for e in range(4):
                P("v_add_f32", v(BASE + 4 * z + e), v(BASE + 4 * z + e), v(RB + (z * 4 + kw) * 4 + e))
        P("s_mov_b32", s(s_tmp3), 8192 * z)
        P("buffer_store_dwordx4", v(BASE + 4 * z, 4), v(xo), srd(sOut), s(s_tmp3), mods="offen")

def finish(P):
    if cfg.stamps:
        stamp(P, "end")
        P("s_waitcnt", "vmcnt(0) lgkmcnt(0)")
        P("s_memrealtime", s(16, 2))
        P("s_waitcnt", "lgkmcnt(0)")
        n = stamp_n[0]
        for k in range(n): P("v_mov_b32", v(32 + k), s(s_st + 2 * k))
        for k in range(n, 10): P("v_mov_b32", v(32 + k), 0)
        P("v_mov_b32", v(42), s(100))
        P("v_mov_b32", v(43), s(16))
        P("s_lshl_b32", s(s_tmp), "s2", 2)
        P("s_add_u32", s(s_tmp), s(s_tmp), s(s_w))
        P("s_lshl_b32", s(s_tmp), s(s_tmp), 6)
        P("s_add_u32", s(s_tmp), s(s_tmp), hex(WS_STAMP))
        P("v_mov_b32", v(2), s(s_tmp))
        for k in range(3):
            P("buffer_store_dwordx4", v(32 + 4 * k, 4), v(2), srd(sWS), 0, mods=f"offen offset:{16 * k}")
    P.label("L_end")
    P("s_endpgm")

HEADER = open('cdna_kernels/' + NAME + '.s.ref').read().split('; Override launch')[0]

def emit(path):
    P = build()
    L = finalize(P)
    out = [HEADER.rstrip('\n')]
    out.append(f"; @launch grid=(256,1,1) block=(256,1,1) lds={LDS_BYTES}")
    out.append('.amdgcn_target "amdgcn-amd-amdhsa--gfx950"')
    out.append(".text")
    out.append(f".globl {NAME}_kernel")
    out.append(".p2align 8")
    out.append(f".type {NAME}_kernel,@function")
    out.append(f"{NAME}_kernel:")
    for i in L:
        t = i.text()
        if t: out.append(("" if i.kind == 'label' else "    ") + t)
    out.append('.section .rodata,"a"')
    out.append(".p2align 6")
    out.append(f".amdhsa_kernel {NAME}_kernel")
    out.append("  .amdhsa_next_free_vgpr 512")
    out.append("  .amdhsa_next_free_sgpr 102")
    out.append("  .amdhsa_accum_offset 256")
    out.append("  .amdhsa_group_segment_fixed_size 0")
    out.append("  .amdhsa_kernarg_size 128")
    out.append("  .amdhsa_user_sgpr_count 2")
    out.append("  .amdhsa_user_sgpr_kernarg_segment_ptr 1")
    out.append("  .amdhsa_system_sgpr_workgroup_id_x 1")
    out.append(".end_amdhsa_kernel")
    open(path, 'w').write("\n".join(out) + "\n")
    print("instructions:", len(L), file=sys.stderr)

if __name__ == "__main__":
    path = 'cdna_kernels/' + NAME + '.s'
    for arg in sys.argv[1:]:
        if arg == 'stamps': cfg.stamps = True
        elif arg == 'p1': cfg.stop_after_p1 = True
        elif arg.startswith('out='): path = arg[4:]
    emit(path)
```
